```python
import torch

def _softmax(x, axis=-1):
    return torch.softmax(x, dim=axis)
def _gelu(x):
    return torch.nn.functional.gelu(x, approximate="tanh")
def _silu(x):
    return torch.nn.functional.silu(x)
def _sigmoid(x):
    return torch.sigmoid(x)
def _layernorm(x, axis=-1, eps=1e-5):
    m = x.mean(dim=axis, keepdim=True)
    v = x.var(dim=axis, keepdim=True, unbiased=False)
    return (x - m) / torch.sqrt(v + eps)
def _scatter_add(tgt, idx, src, axis=0):
    return tgt.clone().index_add_(axis, idx, src)
def _segment_sum(src, seg, n):
    out = torch.zeros((n,) + src.shape[1:], dtype=src.dtype)
    return out.index_add_(0, seg, src)
def _pad(x, pw):
    flat = tuple(v for pair in reversed(pw) for v in pair)
    return torch.nn.functional.pad(x, flat)

kernel_name = 'standalone__mha_block_cached__near_ridge'

def setup_inputs():

    _w = (lambda a: (lambda t: t.to(torch.bfloat16) if t.is_floating_point() else t)(torch.as_tensor(a)))
    B, Sq, D = 16, 64, 1024
    H, Sk, Dh = 32, 512, 128
    return {
        "x": _w((lambda *s: torch.randn(*s, dtype=torch.bfloat16) * 0.8)(B, Sq, D)),
        "k_cache": _w((lambda *s: torch.randn(*s, dtype=torch.bfloat16) * 0.8)(B, H, Sk, Dh)),
        "v_cache": _w((lambda *s: torch.randn(*s, dtype=torch.bfloat16) * 0.05)(B, H, Sk, Dh)),
        "wq": _w((lambda *s: torch.randn(*s, dtype=torch.bfloat16) * 0.8)(D, H * Dh) * (D ** -0.5)),
        "wo": _w((lambda *s: torch.randn(*s, dtype=torch.bfloat16) * 0.05)(H * Dh, D) * ((H * Dh) ** -0.5)),
    }

def reference(x, k_cache, v_cache, wq, wo):
    B, Sq, D = x.shape
    H, Dh = 32, 128
    q = (lambda x, *d: x.permute(*d))((x @ wq).reshape(B, Sq, H, Dh), 0, 2, 1, 3)
    scores = torch.einsum("bhqd,bhkd->bhqk", q, k_cache) * (Dh ** -0.5)
    p = _softmax(scores, axis=-1)
    o = torch.einsum("bhqk,bhkd->bhqd", p, v_cache)
    return (lambda x, *d: x.permute(*d))(o, 0, 2, 1, 3).reshape(B, Sq, H * Dh) @ wo
```

```python
import re

REG_RE = re.compile(r'^([vas])(\d+)$|^([vas])\[(\d+):(\d+)\]$')
TRANS = ('v_exp_f32', 'v_log_f32', 'v_rcp_f32', 'v_rsq_f32', 'v_sqrt_f32', 'v_sin_f32', 'v_cos_f32')

def regs_of(op):
    op = op.strip()
    if op.startswith('-'): op = op[1:]
    if op.startswith('abs(') or op.startswith('|'):
        op = op.replace('abs(', '').replace(')', '').replace('|', '')
    if op == 'vcc': return {('s', 106), ('s', 107)}
    if op == 'exec': return {('s', 126), ('s', 127)}
    if op == 'm0': return {('s', 124)}
    m = REG_RE.match(op)
    if not m: return set()
    if m.group(1): return {(m.group(1), int(m.group(2)))}
    return {(m.group(3), i) for i in range(int(m.group(4)), int(m.group(5)) + 1)}

class Ins:
    __slots__ = ('text', 'mn', 'kind', 'wr', 'rd', 'A', 'B', 'C', 'ws', 'passes', 'data')
    def __init__(self, text):
        self.text = text
        body = text.split(';')[0].strip()
        parts = body.split(None, 1)
        mn = parts[0]
        self.mn = mn
        rest = parts[1] if len(parts) > 1 else ''
        ops = [o.strip() for o in rest.split(',')] if rest else []
        mods = []
        if ops:
            sp = ops[-1].split()
            ops[-1] = sp[0] if sp else ''
            mods = sp[1:]
        self.wr = set(); self.rd = set(); self.A = self.B = self.C = set(); self.data = set()
        self.ws = 1; self.passes = 0
        base = mn.replace('_e32', '').replace('_e64', '')
        if mn.startswith('v_mfma'):
            self.kind = 'mfma'
            self.wr = regs_of(ops[0]); self.A = regs_of(ops[1]); self.B = regs_of(ops[2]); self.C = regs_of(ops[3])
            self.rd = self.A | self.B | self.C
            self.passes = 8 if '32x32x16' in mn else 4
        elif mn.startswith('v_'):
            self.kind = 'trans' if base in TRANS else 'valu'
            if base.startswith('v_permlane'):
                self.wr = regs_of(ops[0]) | regs_of(ops[1]); self.rd = set(self.wr); self.kind = 'perm'
            elif base in ('v_readfirstlane_b32', 'v_readlane_b32'):
                self.wr = regs_of(ops[0]); self.rd = set().union(*[regs_of(o) for o in ops[1:]]); self.kind = 'rdlane'
            else:
                self.wr = regs_of(ops[0])
                self.rd = set().union(*[regs_of(o) for o in ops[1:]]) if len(ops) > 1 else set()
                if base.startswith('v_fmac') or base.startswith('v_pk_fmac'): self.rd |= self.wr
                if base in ('v_add_co_u32', 'v_addc_co_u32', 'v_sub_co_u32'):
                    self.wr |= regs_of(ops[1])
        elif mn.startswith('ds_read') or mn.startswith('ds_bpermute') or mn.startswith('ds_swizzle'):
            self.kind = 'ds'; self.wr = regs_of(ops[0]); self.rd = set().union(*[regs_of(o) for o in ops[1:]])
        elif mn.startswith('ds_'):
            self.kind = 'ds'; self.rd = set().union(*[regs_of(o) for o in ops])
        elif mn.startswith('buffer_load') or mn.startswith('global_load'):
            self.kind = 'vmem'
            if 'lds' in mods or 'lds' in mn:
                self.rd = set().union(*[regs_of(o) for o in ops]) | regs_of('m0'); self.kind = 'dma'
            else:
                self.wr = regs_of(ops[0]); self.rd = set().union(*[regs_of(o) for o in ops[1:]])
        elif mn.startswith('buffer_store') or mn.startswith('buffer_atomic'):
            self.kind = 'vmem'; self.rd = set().union(*[regs_of(o) for o in ops])
            if 'x4' in mn or 'x3' in mn: self.data = regs_of(ops[0])
            if mn.startswith('buffer_atomic') and 'sc0' in mods: self.wr = regs_of(ops[0])
        elif mn.startswith('global_store') or mn.startswith('global_atomic'):
            self.kind = 'vmem'; self.rd = set().union(*[regs_of(o) for o in ops])
            if 'x4' in mn or 'x3' in mn: self.data = regs_of(ops[1])
        elif mn.startswith('buffer_'):
            self.kind = 'vmemctl'
        elif mn == 's_nop':
            self.kind = 'nop'; self.ws = int(ops[0], 0) + 1
        elif mn.startswith('s_'):
            self.kind = 'salu'
            if mn.startswith(('s_cmp', 's_cbranch', 's_branch', 's_waitcnt', 's_barrier', 's_endpgm', 's_sleep', 's_setprio', 's_bitcmp', 's_setpc')):
                self.rd = set().union(*[regs_of(o) for o in ops]) if ops else set()
            else:
                self.wr = regs_of(ops[0]) if ops else set()
                self.rd = set().union(*[regs_of(o) for o in ops[1:]]) if len(ops) > 1 else set()
                if 'saveexec' in mn: self.wr |= regs_of('exec')
        else:
            raise ValueError('unknown instr ' + text)

def isv(r): return r[0] in 'va'
VALUK = ('valu', 'trans', 'perm', 'rdlane')

def need(p, c):
    n = 0
    if p.kind in VALUK:
        vw = {r for r in p.wr if isv(r)}; sw = {r for r in p.wr if r[0] == 's'}
        if c.kind == 'mfma' and vw & c.rd: n = max(n, 2)
        if c.kind == 'perm' and vw & c.rd: n = max(n, 2)
        if c.kind == 'rdlane' and vw & c.rd: n = max(n, 1)
        if p.kind == 'trans' and c.kind in ('valu', 'perm', 'rdlane') and vw & (c.rd | c.wr): n = max(n, 1)
        if p.kind == 'trans' and c.kind in ('vmem', 'ds', 'dma') and vw & c.rd: n = max(n, 1)
        if sw:
            if c.kind in ('vmem', 'dma') and sw & c.rd: n = max(n, 5)
            if c.kind in VALUK and sw & c.rd: n = max(n, 4 if c.kind == 'rdlane' else 2)
            if c.kind == 'salu' and sw & c.rd: n = max(n, 2)
    if p.kind == 'mfma':
        big = {8: 12, 4: 8}[p.passes]; ovl = {8: 10, 4: 6}[p.passes]; war = {8: 7, 4: 3}[p.passes]
        if c.kind == 'mfma':
            if p.wr & (c.A | c.B): n = max(n, big)
            if p.wr & c.C and not (p.wr == c.C and p.passes == c.passes): n = max(n, ovl)
            if p.wr & c.wr and not (p.wr == c.C): n = max(n, big)
        elif c.kind in VALUK or c.kind in ('vmem', 'ds', 'dma'):
            if p.wr & (c.rd | c.wr): n = max(n, big)
            if c.kind in VALUK and p.C & c.wr: n = max(n, war)
            if c.kind in ('vmem', 'ds') and p.C & c.wr: n = max(n, war)
    if p.kind == 'salu' and ('s', 124) in p.wr and c.kind == 'dma': n = max(n, 1)
    if p.kind == 'vmem' and p.data and p.data & c.wr: n = max(n, 2)
    return n

class Asm:
    def __init__(self):
        self.out = []
        self.hist = []
        self.vm = []
        self.lg = []
        self.nnop = 0
    def raw(self, s): self.out.append(s)
    def C(self, s): self.out.append('    ; ' + s)
    def label(self, name):
        self.out.append(name + ':')
    def I(self, text, tag=None):
        ins = Ins(text)
        dist = 0; req = 0
        for p in reversed(self.hist):
            r = need(p, ins) - dist
            if r > req: req = r
            dist += p.ws
            if dist >= 20: break
        while req > 0:
            k = min(req, 16)
            nop = Ins(f's_nop {k-1}')
            self.out.append(f'    s_nop {k-1}'); self.hist.append(nop); req -= k; self.nnop += 1
        self.out.append('    ' + text)
        self.hist.append(ins)
        if len(self.hist) > 64: self.hist = self.hist[-32:]
        if ins.kind in ('vmem', 'dma'): self.vm.append(tag)
        if ins.kind == 'ds': self.lg.append(tag)
        return ins
    def _cnt(self, q, tags):
        last = -1
        for i, t in enumerate(q):
            if t in tags: last = i
        if last < 0: return None
        return len(q) - 1 - last
    def wait(self, vm=None, lg=None):
        parts = []
        if vm is not None:
            n = 0 if vm == 'all' else self._cnt(self.vm, vm if isinstance(vm, (list, set)) else [vm])
            if n is not None and (n < len(self.vm)):
                n2 = min(n, 63); parts.append(f'vmcnt({n2})'); self.vm = self.vm[len(self.vm) - n2:] if n2 else []
        if lg is not None:
            n = 0 if lg == 'all' else self._cnt(self.lg, lg if isinstance(lg, (list, set)) else [lg])
            if n is not None and (n < len(self.lg)):
                n2 = min(n, 15); parts.append(f'lgkmcnt({n2})'); self.lg = self.lg[len(self.lg) - n2:] if n2 else []
        if parts: self.I('s_waitcnt ' + ' '.join(parts))
    def text(self): return '\n'.join(self.out) + '\n'

def vr(b, n=1): return f'v{b}' if n == 1 else f'v[{b}:{b+n-1}]'
def ar(b, n=1): return f'a{b}' if n == 1 else f'a[{b}:{b+n-1}]'
def sr(b, n=1): return f's{b}' if n == 1 else f's[{b}:{b+n-1}]'
```

```python
import sys, struct
from asmdsl import *

NAME = 'standalone__mha_block_cached__near_ridge'
HEADER = open('cdna_kernels/' + NAME + '.s.ref').read().split('; Override launch')[0]

def f32bits(x): return struct.unpack('<I', struct.pack('<f', x))[0]

DEF = dict(
    nstg=4,
    kvflag='nt', xflag='', wqflag='', woflag='', oldflag='', ostflag='',
    order='xor', key_shift=2,
    kpre={8: [0, 1], 12: [2], 16: [3], 20: [4], 24: [5]},
    lmin=3, ldec=3,
    stamps=False,
    o_rot=True,
)

SLOT = 16384
NSLOT = 10
STAMP_OFF = 64 << 20

def kd(name, vgpr, sgpr, acc):
    return f'''.amdhsa_kernel {name}
  .amdhsa_next_free_vgpr {vgpr}
  .amdhsa_next_free_sgpr {sgpr}
  .amdhsa_accum_offset {acc}
  .amdhsa_group_segment_fixed_size 0
  .amdhsa_kernarg_size 64
  .amdhsa_user_sgpr_count 2
  .amdhsa_user_sgpr_kernarg_segment_ptr 1
  .amdhsa_system_sgpr_workgroup_id_x 1
.end_amdhsa_kernel
'''

def srd(a, d, plo, off_sreg, nrec):
    a.I(f's_add_u32 s{d}, s{plo}, s{off_sreg}')
    a.I(f's_addc_u32 s{d+1}, s{plo+1}, 0')
    if isinstance(nrec, str): a.I(f's_mov_b32 s{d+2}, {nrec}')
    else: a.I(f's_mov_b32 s{d+2}, {nrec:#x}')
    a.I(f's_mov_b32 s{d+3}, 0x20000')

class Stamps:
    def __init__(self, a, on, base_s, kidx):
        self.a = a; self.on = on; self.n = 0; self.b = base_s; self.kidx = kidx
    def stamp(self):
        if not self.on: return
        a = self.a
        a.I(f's_memrealtime s[{self.b+2*self.n}:{self.b+2*self.n+1}]')
        self.n += 1
    def flush(self, ws_lo, s_wave, tmp_s, tmp_v):
        if not self.on: return
        a = self.a
        a.I('s_waitcnt lgkmcnt(0)')
        a.I(f's_lshl_b32 s{tmp_s}, s2, 2')
        a.I(f's_add_u32 s{tmp_s}, s{tmp_s}, s{s_wave}')
        a.I(f's_lshl_b32 s{tmp_s}, s{tmp_s}, 7')
        a.I(f's_add_u32 s{tmp_s}, s{tmp_s}, {STAMP_OFF + self.kidx*(1<<20):#x}')
        d = (tmp_s + 4) & ~3
        srd(a, d, ws_lo, tmp_s, 128)
        a.I(f'v_mov_b32 v{tmp_v}, 0')
        for i in range(self.n):
            a.I(f'v_mov_b32 v{tmp_v+2}, s{self.b+2*i}')
            a.I(f'v_mov_b32 v{tmp_v+3}, s{self.b+2*i+1}')
            a.I(f'buffer_store_dwordx2 v[{tmp_v+2}:{tmp_v+3}], v{tmp_v}, s[{d}:{d+3}], 0 offen offset:{8*i}')
            a.I('s_waitcnt vmcnt(0)')

def interleave(a, main, fill):
    n = len(main); k = 0
    for i, m in enumerate(main):
        m()
        upto = (len(fill) * (i + 1)) // n
        while k < upto:
            fill[k](); k += 1

def lane_tr_parts(a, vlane, vt):
    a.I(f'v_lshrrev_b32 v{vt}, 5, v{vlane}')
    a.I(f'v_bfe_u32 v{vt+1}, v{vlane}, 2, 2')
    a.I(f'v_bfe_u32 v{vt+2}, v{vlane}, 4, 1')
    a.I(f'v_lshlrev_b32 v{vt+2}, 5, v{vt+2}')
    a.I(f'v_and_b32 v{vt+3}, 1, v{vlane}')
    a.I(f'v_lshlrev_b32 v{vt+3}, 4, v{vt+3}')
    a.I(f'v_add_u32 v{vt+2}, v{vt+2}, v{vt+3}')
    a.I(f'v_bfe_u32 v{vt+3}, v{vlane}, 1, 1')
    a.I(f'v_lshlrev_b32 v{vt+3}, 3, v{vt+3}')
    a.I(f'v_add_u32 v{vt+2}, v{vt+2}, v{vt+3}')

def gen_k1(P, name):
    a = Asm()
    S = P['nstg']
    STG0 = (NSLOT - S) * SLOT
    sW, sW2K, sW4K = 3, 14, 15
    sX, sWQ, sK, sV, sO = 16, 20, 24, 28, 32
    sCH, sXO, sWO, sKEY, sC, sT0, sT1, sT2, sT3 = 36, 37, 38, 39, 40, 41, 42, 43, 44
    sKO = 45
    st = Stamps(a, P['stamps'], 60, 0)
    vL = 1
    vXS, vWS, vKD, vVD = 2, 4, 6, 10
    vXA, vWA, vKA, vVA = 12, 14, 18, 26
    vM, vNM, vL0, vT = 30, 31, 32, 36
    vPF = 52
    vACC = 68
    vQ = 132
    vF = 164
    a.raw(f'.globl {name}'); a.raw('.p2align 8'); a.raw(f'.type {name},@function'); a.label(name)
    a.I('s_cmp_ge_u32 s2, 256')
    a.I(f's_cbranch_scc1 L_{name}_end')
    st.stamp()
    a.I('s_load_dwordx4 s[4:7], s[0:1], 0')
    a.I('s_load_dwordx4 s[8:11], s[0:1], 16')
    a.I('s_load_dwordx2 s[12:13], s[0:1], 56')
    a.I(f'v_lshrrev_b32 v{vT}, 6, v0')
    a.I(f'v_and_b32 v{vL}, 63, v0')
    a.I(f'v_readfirstlane_b32 s{sW}, v{vT}')
    sH, sB0 = 46, 47
    a.I(f's_and_b32 s{sT0}, s2, 3')
    a.I(f's_lshl_b32 s{sT0}, s{sT0}, 3')
    a.I(f's_bfe_u32 s{sT1}, s2, 0x30003')
    a.I(f's_add_u32 s{sH}, s{sT0}, s{sT1}')
    a.I(f's_bfe_u32 s{sT0}, s2, 0x10002')
    a.I(f's_lshl_b32 s{sT0}, s{sT0}, 3')
    a.I(f's_lshr_b32 s{sT2}, s2, 6')
    a.I(f's_lshl_b32 s{sT3}, s{sT2}, 1')
    a.I(f's_add_u32 s{sB0}, s{sT0}, s{sT3}')
    if P['order'] == 'xor':
        a.I(f's_xor_b32 s{sKEY}, s{sT1}, s{sT2}')
        a.I(f's_lshl_b32 s{sKEY}, s{sKEY}, {P["key_shift"]}')
    elif P['order'] == 'xor2':
        a.I(f's_lshl_b32 s{sT3}, s{sT2}, 1')
        a.I(f's_xor_b32 s{sKEY}, s{sT1}, s{sT3}')
        a.I(f's_lshl_b32 s{sKEY}, s{sKEY}, {P["key_shift"]}')
    else:
        a.I(f's_mov_b32 s{sKEY}, 0')
    a.I(f's_lshl_b32 s{sW2K}, s{sW}, 11')
    a.I(f's_lshl_b32 s{sW4K}, s{sW}, 12')
    a.I(f's_mov_b32 s{sC}, {f32bits(128 ** -0.5 * 1.4426950408889634):#x}')
    t = vT
    a.I(f'v_lshrrev_b32 v{t}, 2, v{vL}')
    a.I(f'v_lshlrev_b32 v{t}, 11, v{t}')
    a.I(f'v_lshrrev_b32 v{t+1}, 4, v{vL}')
    a.I(f'v_and_b32 v{t+2}, 3, v{vL}')
    a.I(f'v_xor_b32 v{t+2}, v{t+2}, v{t+1}')
    a.I(f'v_lshl_add_u32 v{vXS}, v{t+2}, 4, v{t}')
    a.I(f'v_add_u32 v{vXS+1}, {16*2048-1024}, v{vXS}')
    a.I(f'v_and_b32 v{t+2}, 15, v{vL}')
    a.I(f'v_lshlrev_b32 v{t+3}, 2, v{t+1}')
    a.I(f'v_xor_b32 v{t+3}, v{t+2}, v{t+3}')
    a.I(f'v_lshlrev_b32 v{t+3}, 4, v{t+3}')
    a.I(f'v_lshl_add_u32 v{vWS}, v{t+1}, 13, v{t+3}')
    a.I(f'v_add_u32 v{vWS+1}, {4*8192-1024}, v{vWS}')
    a.I(f'v_lshl_add_u32 v{vVD}, v{t+1}, 8, v{t+3}')
    a.I(f'v_xor_b32 v{t+3}, v{t+2}, v{t+1}')
    a.I(f'v_lshlrev_b32 v{t+3}, 4, v{t+3}')
    a.I(f'v_lshl_add_u32 v{vKD}, v{t+1}, 8, v{t+3}')
    for n in range(1, 4):
        a.I(f'v_xor_b32 v{vKD+n}, {64*n}, v{vKD}')
    a.I('s_waitcnt lgkmcnt(0)')
    a.I(f's_lshl_b32 s{sT0}, s{sB0}, 17')
    a.I(f's_lshl_b32 s{sT1}, s{sW}, 16')
    a.I(f's_add_u32 s{sT0}, s{sT0}, s{sT1}')
    srd(a, sX, 4, sT0, 65536)
    a.I(f's_lshl_b32 s{sT0}, s{sH}, 8')
    a.I(f's_add_u32 s{sT0}, s{sT0}, s{sT1}')
    a.I(f's_sub_u32 s{sT2}, {8<<20:#x}, s{sT0}')
    srd(a, sWQ, 10, sT0, f's{sT2}')
    a.I(f's_lshr_b32 s{sT1}, s{sW}, 1')
    a.I(f's_add_u32 s{sT1}, s{sT1}, s{sB0}')
    a.I(f's_lshl_b32 s{sT0}, s{sT1}, 5')
    a.I(f's_add_u32 s{sT0}, s{sT0}, s{sH}')
    a.I(f's_lshl_b32 s{sT0}, s{sT0}, 17')
    a.I(f's_and_b32 s{sT2}, s{sW}, 1')
    a.I(f's_lshl_b32 s{sT3}, s{sT2}, 12')
    a.I(f's_add_u32 s{sT0}, s{sT0}, s{sT3}')
    a.I(f's_sub_u32 s{sT3}, {131072:#x}, s{sT3}')
    srd(a, sK, 6, sT0, f's{sT3}')
    srd(a, sV, 8, sT0, f's{sT3}')
    a.I(f's_lshl_b32 s{sT0}, s{sT1}, 1')
    a.I(f's_add_u32 s{sT0}, s{sT0}, s{sT2}')
    a.I(f's_lshl_b32 s{sT0}, s{sT0}, 18')
    a.I(f's_lshl_b32 s{sT3}, s{sH}, 13')
    a.I(f's_add_u32 s{sT0}, s{sT0}, s{sT3}')
    srd(a, sO, 12, sT0, 8192)

    def stage_loads(s):
        slot = STG0 + (s % S) * SLOT
        L = []
        def p0():
            a.I(f's_xor_b32 s{sCH}, s{sKEY}, {s}')
            a.I(f's_lshl_b32 s{sXO}, s{sCH}, 6')
            a.I(f's_lshl_b32 s{sWO}, s{sCH}, 18')
            a.I(f's_add_u32 m0, s{sW2K}, {slot + 8192}')
            a.I(f'buffer_load_dwordx4 v{vWS}, s[{sWQ}:{sWQ+3}], s{sWO} offen {P["wqflag"]} lds', ('st', s))
        def p1():
            a.I(f'buffer_load_dwordx4 v{vWS+1}, s[{sWQ}:{sWQ+3}], s{sWO} offen offset:1024 {P["wqflag"]} lds', ('st', s))
        def p2():
            a.I(f's_add_u32 m0, s{sW2K}, {slot}')
            a.I(f'buffer_load_dwordx4 v{vXS}, s[{sX}:{sX+3}], s{sXO} offen {P["xflag"]} lds', ('st', s))
        def p3():
            a.I(f'buffer_load_dwordx4 v{vXS+1}, s[{sX}:{sX+3}], s{sXO} offen offset:1024 {P["xflag"]} lds', ('st', s))
        return [p0, p1, p2, p3]

    issued = set()
    def kv_loads(ls):
        issued.add(ls)
        slot = (ls % NSLOT) * SLOT
        L = []
        for n in range(4):
            def p(n=n):
                if n == 0:
                    a.I(f's_mov_b32 s{sKO}, {(ls % 16) * 8192}')
                    a.I(f's_add_u32 m0, s{sW4K}, {slot}')
                if ls < 16:
                    a.I(f'buffer_load_dwordx4 v{vKD+n}, s[{sK}:{sK+3}], s{sKO} offen offset:{1024*n} {P["kvflag"]} lds', ('kv', ls))
                else:
                    a.I(f'buffer_load_dwordx4 v{vVD}, s[{sV}:{sV+3}], s{sKO} offen offset:{1024*n} {P["kvflag"]} lds', ('kv', ls))
            L.append(p)
        return L

    for s in range(S):
        for p in stage_loads(s): p()
    for ls in P['kpre'].get(-1, []):
        for p in kv_loads(ls): p()
    lane_tr_parts(a, vL, t)
    a.I(f'v_lshlrev_b32 v{t+3}, 6, v{t+1}')
    a.I(f'v_add_u32 v{t+3}, v{t+3}, v{t+2}')
    a.I(f'v_lshl_add_u32 v{t+3}, v{t+1}, 8, v{t+3}')
    a.I(f'v_lshl_add_u32 v{vWA}, v{t}, 11, v{t+3}')
    a.I(f'v_add_u32 v{vWA}, {STG0}, v{vWA}')
    a.I(f's_lshr_b32 s{sT0}, s{sW}, 1')
    a.I(f's_lshl_b32 s{sT0}, s{sT0}, 13')
    a.I(f'v_lshl_add_u32 v{vVA}, v{t}, 10, v{t+3}')
    a.I(f'v_add_u32 v{vVA}, s{sT0}, v{vVA}')
    for tt in range(1, 4):
        a.I(f'v_xor_b32 v{vWA+tt}, {64*tt}, v{vWA}')
        a.I(f'v_xor_b32 v{vVA+tt}, {64*tt}, v{vVA}')
    a.I(f'v_and_b32 v{t+3}, 31, v{vL}')
    a.I(f'v_xor_b32 v{t+4}, v{t}, v{t+1}')
    a.I(f'v_lshlrev_b32 v{t+4}, 4, v{t+4}')
    a.I(f'v_lshl_add_u32 v{vXA}, v{t+3}, 6, v{t+4}')
    a.I(f's_add_u32 s{sT1}, s{sW2K}, {STG0}')
    a.I(f'v_add_u32 v{vXA}, s{sT1}, v{vXA}')
    a.I(f'v_xor_b32 v{vXA+1}, 32, v{vXA}')
    a.I(f'v_and_b32 v{t+4}, 15, v{vL}')
    a.I(f'v_xor_b32 v{t+4}, v{t+4}, v{t}')
    a.I(f'v_lshlrev_b32 v{t+4}, 4, v{t+4}')
    a.I(f'v_lshl_add_u32 v{vKA}, v{t+3}, 8, v{t+4}')
    a.I(f'v_add_u32 v{vKA}, s{sT0}, v{vKA}')
    for kk in range(1, 8):
        a.I(f'v_xor_b32 v{vKA+kk}, {32*kk}, v{vKA}')

    def q_reads(tk):
        s, ks = tk >> 1, tk & 1
        off = (s % S) * SLOT
        fb = vF + (tk & 1) * 20
        a.I(f'ds_read_b128 {vr(fb+16,4)}, v{vXA+ks} offset:{off}', ('q', tk))
        for tt in range(4):
            for u in range(2):
                a.I(f'ds_read_b64_tr_b16 {vr(fb+4*tt+2*u,2)}, v{vWA+tt} offset:{off + 8192 + ks*4096 + u*1024}', ('q', tk))
    def q_mfma(tk, tt):
        fb = vF + (tk & 1) * 20
        c = '0' if tk == 0 else vr(vACC + 16*tt, 16)
        a.I(f'v_mfma_f32_32x32x16_bf16 {vr(vACC+16*tt,16)}, {vr(fb+4*tt,4)}, {vr(fb+16,4)}, {c}')
    a.wait(vm=('st', 0))
    a.I('s_barrier')
    q_reads(0)
    for tk in range(64):
        s = tk >> 1
        fill = []
        if tk & 1:
            a.wait(lg=('q', tk))
            if s + 1 < 32:
                a.wait(vm=('st', s + 1))
                a.I('s_barrier')
                q_reads(tk + 1)
                if s + S < 32: fill += stage_loads(s + S)
                for ls in P['kpre'].get(s, []): fill += kv_loads(ls)
        else:
            q_reads(tk + 1)
            a.wait(lg=('q', tk))
        interleave(a, [lambda tt=tt: q_mfma(tk, tt) for tt in range(4)], fill)
    for tt in range(4):
        for k in range(8):
            a.I(f'v_cvt_pk_bf16_f32 v{vQ+8*tt+k}, v{vACC+16*tt+2*k}, v{vACC+16*tt+2*k+1}')
    st.stamp()

    win = {'K': 0, 'V': 0}
    def set_window(which, base_reg, n, off):
        w = off >> 16
        if w != win[which]:
            d = (w - win[which]) << 16
            for i in range(n):
                if d > 0: a.I(f'v_add_u32 v{base_reg+i}, {d:#x}, v{base_reg+i}')
                else: a.I(f'v_subrev_u32 v{base_reg+i}, {-d:#x}, v{base_reg+i}')
            win[which] = w
        return off & 0xffff
    def sched_loads(c):
        look = max(P['lmin'], NSLOT - 1 - c // P['ldec'])
        L = []
        for ls in range(32):
            if ls not in issued and ls <= min(c + look, c + NSLOT - 1):
                L += kv_loads(ls)
        return L
    def max_ops(tile):
        L = []
        for r in range(16):
            L.append(lambda r=r: a.I(f'v_accvgpr_read_b32 v{vT+r}, a{16*tile+r}'))
        for k in range(8):
            if tile == 0 and k == 0:
                L.append(lambda: a.I(f'v_max_f32 v{vM}, v{vT}, v{vT+1}'))
            else:
                L.append(lambda k=k: a.I(f'v_max3_f32 v{vM}, v{vM}, v{vT+2*k}, v{vT+2*k+1}'))
        return L
    for c in range(16):
        imm = set_window('K', vKA, 8, (c % NSLOT) * SLOT)
        a.wait(vm=('kv', c))
        a.I('s_barrier')
        for kk in range(8):
            a.I(f'ds_read_b128 {vr(vF+4*kk,4)}, v{vKA+kk} offset:{imm}', ('k', c, kk))
        if c > 0:
            for f in max_ops(c - 1): f()
        def km(kk):
            a.wait(lg=('k', c, kk))
            cc = '0' if kk == 0 else ar(16*c, 16)
            a.I(f'v_mfma_f32_32x32x16_bf16 {ar(16*c,16)}, {vr(vF+4*kk,4)}, {vr(vQ+4*kk,4)}, {cc}')
        interleave(a, [lambda kk=kk: km(kk) for kk in range(8)], sched_loads(c))
    for f in max_ops(15): f()
    a.I(f'v_mov_b32 v{vT}, v{vM}')
    a.I(f'v_permlane32_swap_b32 v{vM}, v{vT}')
    a.I(f'v_max_f32 v{vM}, v{vM}, v{vT}')
    a.I(f'v_mul_f32 v{vNM}, s{sC}, v{vM}')
    a.I(f'v_sub_f32 v{vNM}, 0, v{vNM}')
    for i in range(4): a.I(f'v_mov_b32 v{vL0+i}, 0')
    st.stamp()
    def p_ops(tile):
        L = []
        pf = vPF + 8 * (tile & 1)
        for half in range(2):
            rs = range(8*half, 8*half + 8)
            for r in rs: L.append(lambda r=r: a.I(f'v_accvgpr_read_b32 v{vT+r}, a{16*tile+r}'))
            for r in rs: L.append(lambda r=r: a.I(f'v_fma_f32 v{vT+r}, v{vT+r}, s{sC}, v{vNM}'))
            for r in rs: L.append(lambda r=r: a.I(f'v_exp_f32 v{vT+r}, v{vT+r}'))
            for r in rs: L.append(lambda r=r: a.I(f'v_add_f32 v{vL0+(r&3)}, v{vL0+(r&3)}, v{vT+r}'))
            for k in range(4*half, 4*half + 4): L.append(lambda k=k: a.I(f'v_cvt_pk_bf16_f32 v{pf+k}, v{vT+2*k}, v{vT+2*k+1}'))
        return L
    for f in p_ops(0): f()
    for tile in range(16):
        c = 16 + tile
        imm = set_window('V', vVA, 4, (c % NSLOT) * SLOT)
        a.wait(vm=('kv', c))
        a.I('s_barrier')
        for a1 in range(2):
            for tt in range(4):
                for u in range(2):
                    a.I(f'ds_read_b64_tr_b16 {vr(vF+16*a1+4*tt+2*u,2)}, v{vVA+tt} offset:{imm + a1*4096 + u*2048}', ('v', c, a1, tt))
        pf = vPF + 8 * (tile & 1)
        def vm_(a1, tt):
            a.wait(lg=('v', c, a1, tt))
            cc = '0' if (tile == 0 and a1 == 0) else vr(vACC + 16*tt, 16)
            a.I(f'v_mfma_f32_32x32x16_bf16 {vr(vACC+16*tt,16)}, {vr(vF+16*a1+4*tt,4)}, {vr(pf+4*a1,4)}, {cc}')
        fill = sched_loads(c) + (p_ops(tile + 1) if tile < 15 else [])
        interleave(a, [lambda a1=a1, tt=tt: vm_(a1, tt) for a1 in range(2) for tt in range(4)], fill)
        if tile == 14:
            a.I(f'v_add_f32 v{vL0}, v{vL0}, v{vL0+1}')
            a.I(f'v_add_f32 v{vL0+2}, v{vL0+2}, v{vL0+3}')
            a.I(f'v_add_f32 v{vL0}, v{vL0}, v{vL0+2}')
            a.I(f'v_mov_b32 v{vL0+1}, v{vL0}')
            a.I(f'v_permlane32_swap_b32 v{vL0}, v{vL0+1}')
            a.I(f'v_add_f32 v{vL0}, v{vL0}, v{vL0+1}')
            a.I(f'v_rcp_f32 v{vL0}, v{vL0}')
            a.I(f'v_lshlrev_b32 v{vM}, 4, v{vL}')
    st.stamp()
    for tt in range(4):
        for r in range(16):
            a.I(f'v_mul_f32 v{vACC+16*tt+r}, v{vL0}, v{vACC+16*tt+r}')
        for k in range(8):
            a.I(f'v_cvt_pk_bf16_f32 v{vQ+8*tt+k}, v{vACC+16*tt+2*k}, v{vACC+16*tt+2*k+1}')
        for a1 in range(2):
            kk = 2*tt + a1
            if kk == 4: a.I(f'v_add_u32 v{vM}, 4096, v{vM}')
            a.I(f'buffer_store_dwordx4 {vr(vQ+4*kk,4)}, v{vM}, s[{sO}:{sO+3}], 0 offen offset:{1024*(kk&3)} {P["ostflag"]}', 'ost')
    if P['stamps']:
        a.wait(vm='all')
        st.stamp()
        st.flush(12, sW, 80, vT)
    a.label(f'L_{name}_end')
    a.I('s_endpgm')
    assert issued == set(range(32))
    return a.text(), kd(name, 512, 96, 256)

def gen_k2(P, name):
    a = Asm()
    sW = 3
    sWO, sOF, sOUT = 16, 20, 24
    sT0, sT1, sT2, sT3, sB, sN0, sROT, sCH, sO1, sO2, sLB = 28, 29, 30, 31, 32, 33, 34, 35, 36, 37, 38
    st = Stamps(a, P['stamps'], 60, 1)
    vL = 1
    vWD, vOD, vWA, vT = 2, 6, 8, 12
    vACC = 32
    vA = 96
    vB = 128
    RING = 40960; CH = 8192; NS = 5; ND = 3
    a.raw(f'.globl {name}'); a.raw('.p2align 8'); a.raw(f'.type {name},@function'); a.label(name)
    a.I('s_cmp_ge_u32 s2, 256')
    a.I(f's_cbranch_scc1 L_{name}_end')
    st.stamp()
    a.I('s_load_dwordx4 s[4:7], s[0:1], 32')
    a.I('s_load_dwordx2 s[12:13], s[0:1], 56')
    a.I(f'v_lshrrev_b32 v{vT}, 6, v0')
    a.I(f'v_and_b32 v{vL}, 63, v0')
    a.I(f'v_readfirstlane_b32 s{sW}, v{vT}')
    a.I(f's_bfe_u32 s{sT0}, s2, 0x10002')
    a.I(f's_lshl_b32 s{sT0}, s{sT0}, 3')
    a.I(f's_bfe_u32 s{sT1}, s2, 0x30003')
    a.I(f's_add_u32 s{sB}, s{sT0}, s{sT1}')
    a.I(f's_and_b32 s{sT0}, s2, 3')
    a.I(f's_lshl_b32 s{sT0}, s{sT0}, 8')
    a.I(f's_lshr_b32 s{sT2}, s2, 6')
    a.I(f's_lshl_b32 s{sT3}, s{sT2}, 6')
    a.I(f's_add_u32 s{sN0}, s{sT0}, s{sT3}')
    if P['o_rot']:
        a.I(f's_lshl_b32 s{sT3}, s{sT2}, 1')
        a.I(f's_xor_b32 s{sROT}, s{sT1}, s{sT3}')
        a.I(f's_lshl_b32 s{sROT}, s{sROT}, 1')
    else:
        a.I(f's_mov_b32 s{sROT}, 0')
    a.I(f's_mul_i32 s{sLB}, s{sW}, {RING}')
    t = vT
    a.I(f'v_lshrrev_b32 v{t}, 3, v{vL}')
    a.I(f'v_bfe_u32 v{t+1}, v{vL}, 4, 1')
    a.I(f'v_lshlrev_b32 v{t+1}, 2, v{t+1}')
    a.I(f'v_and_b32 v{t+2}, 7, v{vL}')
    a.I(f'v_xor_b32 v{t+2}, v{t+2}, v{t+1}')
    a.I(f'v_lshlrev_b32 v{t+2}, 4, v{t+2}')
    a.I(f'v_lshl_add_u32 v{vWD}, v{t}, 11, v{t+2}')
    for j in range(1, 4):
        a.I(f'v_add_u32 v{vWD+j}, {j*(8*2048-1024)}, v{vWD}')
    a.I(f'v_lshlrev_b32 v{vOD}, 4, v{vL}')
    a.I(f'v_add_u32 v{vOD+1}, {256*1024:#x}, v{vOD}')
    a.I('s_waitcnt lgkmcnt(0)')
    a.I(f's_lshl_b32 s{sT0}, s{sW}, 21')
    a.I(f's_lshl_b32 s{sT1}, s{sN0}, 1')
    a.I(f's_add_u32 s{sT0}, s{sT0}, s{sT1}')
    a.I(f's_sub_u32 s{sT2}, {2<<20:#x}, s{sT1}')
    srd(a, sWO, 4, sT0, f's{sT2}')
    a.I(f's_lshl_b32 s{sT0}, s{sB}, 19')
    a.I(f's_lshl_b32 s{sT2}, s{sW}, 16')
    a.I(f's_add_u32 s{sT0}, s{sT0}, s{sT2}')
    srd(a, sOF, 12, sT0, 256*1024 + 65536)
    a.I(f's_lshl_b32 s{sT0}, s{sB}, 17')
    a.I(f's_lshr_b32 s{sT2}, s{sW}, 1')
    a.I(f's_lshl_b32 s{sT2}, s{sT2}, 16')
    a.I(f's_add_u32 s{sT0}, s{sT0}, s{sT2}')
    a.I(f's_and_b32 s{sT2}, s{sW}, 1')
    a.I(f's_lshl_b32 s{sT2}, s{sT2}, 6')
    a.I(f's_add_u32 s{sT1}, s{sT1}, s{sT2}')
    a.I(f's_add_u32 s{sT0}, s{sT0}, s{sT1}')
    a.I(f's_sub_u32 s{sT2}, 65536, s{sT1}')
    srd(a, sOUT, 6, sT0, f's{sT2}')

    def chunk_loads(c):
        L = []
        slot = (c % NS) * CH
        ob = vB + (c % ND) * 32
        for half in range(2):
            for j in range(4):
                def p(half=half, j=j):
                    if j == 0:
                        if half == 0:
                            a.I(f's_xor_b32 s{sCH}, s{sROT}, {c}')
                            a.I(f's_lshl_b32 s{sO1}, s{sCH}, 17')
                            a.I(f's_lshl_b32 s{sO2}, s{sCH}, 12')
                        else:
                            a.I(f's_add_u32 s{sO1}, s{sO1}, {32*2048}')
                        a.I(f's_add_u32 m0, s{sLB}, {slot + half*4096}')
                    a.I(f'buffer_load_dwordx4 v{vWD+j}, s[{sWO}:{sWO+3}], s{sO1} offen offset:{1024*j} {P["woflag"]} lds', ('c', c))
                L.append(p)
        for ks in range(4):
            for qh in range(2):
                L.append(lambda ks=ks, qh=qh: a.I(f'buffer_load_dwordx4 {vr(ob+8*ks+4*qh,4)}, v{vOD+qh}, s[{sOF}:{sOF+3}], s{sO2} offen offset:{1024*ks} {P["oldflag"]}', ('c', c)))
        return L
    for c in range(ND - 1):
        for p in chunk_loads(c): p()
    lane_tr_parts(a, vL, t)
    a.I(f'v_lshrrev_b32 v{t+3}, 1, v{t+1}')
    a.I(f'v_lshl_add_u32 v{t+3}, v{t+3}, 6, v{t+2}')
    a.I(f'v_lshl_add_u32 v{t+3}, v{t+1}, 7, v{t+3}')
    a.I(f'v_lshl_add_u32 v{vWA}, v{t}, 10, v{t+3}')
    a.I(f'v_add_u32 v{vWA}, s{sLB}, v{vWA}')
    a.I(f'v_xor_b32 v{vWA+1}, 64, v{vWA}')
    def reads(k):
        c, ks = k >> 2, k & 3
        fb = vA + (k & 1) * 8
        for tt in range(2):
            for u in range(2):
                a.I(f'ds_read_b64_tr_b16 {vr(fb+4*tt+2*u,2)}, v{vWA+tt} offset:{(c % NS)*CH + ks*2048 + u*512}', ('r', k))
    def mf(k, qh, tt):
        c, ks = k >> 2, k & 3
        fb = vA + (k & 1) * 8
        ob = vB + (c % ND) * 32
        acc = vACC + 16 * (2*qh + tt)
        cc = '0' if k == 0 else vr(acc, 16)
        a.I(f'v_mfma_f32_32x32x16_bf16 {vr(acc,16)}, {vr(fb+4*tt,4)}, {vr(ob+8*ks+4*qh,4)}, {cc}')
    a.wait(vm=('c', 0))
    reads(0)
    pend = []
    for k in range(64):
        c, ks = k >> 2, k & 3
        if ks == 0 and c + ND - 1 < 16:
            pend = chunk_loads(c + ND - 1)
        if k + 1 < 64:
            if ks == 3: a.wait(vm=('c', c + 1))
            reads(k + 1)
        a.wait(lg=('r', k))
        n = (len(pend) + (2 - ks)) // (3 - ks) if ks < 3 else len(pend)
        fill, pend = pend[:n], pend[n:]
        interleave(a, [lambda qh=qh, tt=tt: mf(k, qh, tt) for qh in range(2) for tt in range(2)], fill)
    st.stamp()
    a.I(f'v_add_u32 v{t}, s{sLB}, v{vOD}')
    for tile in range(4):
        for qd in range(4):
            a.I(f'ds_write_b128 v{t}, {vr(vACC+16*tile+4*qd,4)} offset:{tile*4096 + qd*1024}', 'w')
    a.I(f's_lshl_b32 s{sT0}, s{sW}, 12')
    a.I(f'v_add_u32 v{t}, s{sT0}, v{vOD}')
    a.I(f'v_add_u32 v{t+1}, {2*RING:#x}, v{t}')
    a.I(f'v_and_b32 v{t+2}, 31, v{vL}')
    a.I(f'v_lshrrev_b32 v{t+3}, 5, v{vL}')
    a.I(f'v_lshlrev_b32 v{t+3}, 4, v{t+3}')
    a.I(f'v_lshl_add_u32 v{t+2}, v{t+2}, 11, v{t+3}')
    a.wait(lg='all')
    a.I('s_barrier')
    for w in range(4):
        for qd in range(4):
            a.I(f'ds_read_b128 {vr(vB+16*w+4*qd,4)}, v{t+(w>>1)} offset:{(w&1)*RING + qd*1024}', ('z', w))
    a.wait(lg=('z', 1))
    for r in range(16): a.I(f'v_add_f32 v{vB+r}, v{vB+r}, v{vB+16+r}')
    a.wait(lg=('z', 3))
    for r in range(16): a.I(f'v_add_f32 v{vB+32+r}, v{vB+32+r}, v{vB+48+r}')
    for r in range(16): a.I(f'v_add_f32 v{vB+r}, v{vB+r}, v{vB+32+r}')
    for k in range(8): a.I(f'v_cvt_pk_bf16_f32 v{vA+k}, v{vB+2*k}, v{vB+2*k+1}')
    for a1 in range(2):
        a.I(f'buffer_store_dwordx4 {vr(vA+4*a1,4)}, v{t+2}, s[{sOUT}:{sOUT+3}], 0 offen offset:{32*a1}', 'out')
    if P['stamps']:
        a.wait(vm='all')
        st.stamp()
        st.flush(12, sW, 80, vT)
    a.label(f'L_{name}_end')
    a.I('s_endpgm')
    return a.text(), kd(name, 256, 96, 256)

def gen(**kw):
    P = dict(DEF); P.update(kw)
    k1, d1 = gen_k1(P, 'attn_kernel')
    k2, d2 = gen_k2(P, 'oproj_kernel')
    s = HEADER
    s += '; @launch kernel=attn_kernel grid=(256,1,1) block=(256,1,1) lds=163840\n'
    s += '; @launch kernel=oproj_kernel grid=(256,1,1) block=(256,1,1) lds=163840\n'
    s += '.amdgcn_target "amdgcn-amd-amdhsa--gfx950"\n.text\n'
    s += k1 + k2
    s += '.section .rodata,"a"\n.p2align 6\n' + d1 + '.p2align 6\n' + d2
    return s

if __name__ == '__main__':
    out = sys.argv[1] if len(sys.argv) > 1 else f'cdna_kernels/{NAME}.s'
    open(out, 'w').write(gen())
    print('wrote', out)
```
